```python
import torch

def _softmax(x, axis=-1):
    return torch.softmax(x, dim=axis)
def _gelu(x):
    return torch.nn.functional.gelu(x, approximate="tanh")
def _silu(x):
    return torch.nn.functional.silu(x)
def _sigmoid(x):
    return torch.sigmoid(x)
def _layernorm(x, axis=-1, eps=1e-5):
    m = x.mean(dim=axis, keepdim=True)
    v = x.var(dim=axis, keepdim=True, unbiased=False)
    return (x - m) / torch.sqrt(v + eps)
def _scatter_add(tgt, idx, src, axis=0):
    return tgt.clone().index_add_(axis, idx, src)
def _segment_sum(src, seg, n):
    out = torch.zeros((n,) + src.shape[1:], dtype=src.dtype)
    return out.index_add_(0, seg, src)
def _pad(x, pw):
    flat = tuple(v for pair in reversed(pw) for v in pair)
    return torch.nn.functional.pad(x, flat)

kernel_name = 'concat_heads__gqa_block_cached__gqa_block_cached__decode'

def setup_inputs():

    _w = (lambda a: (lambda t: t.to(torch.bfloat16) if t.is_floating_point() else t)(torch.as_tensor(a)))
    def _A_setup():
        B, Sq, D = 4, 1, 640
        Hq, Hkv, Sk, Dh = 32, 32, 4096, 128
        assert Hq % Hkv == 0, (Hq, Hkv)
        return {
            "x": _w((lambda *s: torch.randn(*s, dtype=torch.bfloat16) * 0.8)(B, Sq, D)),
            "k_cache": _w((lambda *s: torch.randn(*s, dtype=torch.bfloat16) * 0.8)(B, Hkv, Sk, Dh)),
            "v_cache": _w((lambda *s: torch.randn(*s, dtype=torch.bfloat16) * 0.05)(B, Hkv, Sk, Dh)),
            "wq": _w((lambda *s: torch.randn(*s, dtype=torch.bfloat16) * 0.8)(D, Hq * Dh) * (D ** -0.5)),
            "wo": _w((lambda *s: torch.randn(*s, dtype=torch.bfloat16) * 0.05)(Hq * Dh, D) * ((Hq * Dh) ** -0.5)),
        }
    _A_in = _A_setup()

    def _B_setup():
        B, Sq, D = 4, 1, 640
        Hq, Hkv, Sk, Dh = 32, 32, 4096, 128
        assert Hq % Hkv == 0, (Hq, Hkv)
        return {
            "x": _w((lambda *s: torch.randn(*s, dtype=torch.bfloat16) * 0.8)(B, Sq, D)),
            "k_cache": _w((lambda *s: torch.randn(*s, dtype=torch.bfloat16) * 0.8)(B, Hkv, Sk, Dh)),
            "v_cache": _w((lambda *s: torch.randn(*s, dtype=torch.bfloat16) * 0.05)(B, Hkv, Sk, Dh)),
            "wq": _w((lambda *s: torch.randn(*s, dtype=torch.bfloat16) * 0.8)(D, Hq * Dh) * (D ** -0.5)),
            "wo": _w((lambda *s: torch.randn(*s, dtype=torch.bfloat16) * 0.05)(Hq * Dh, D) * ((Hq * Dh) ** -0.5)),
        }
    _B_in = _B_setup()

    return {
        "A_x": _A_in["x"],
        "A_k_cache": _A_in["k_cache"],
        "A_v_cache": _A_in["v_cache"],
        "A_wq": _A_in["wq"],
        "A_wo": _A_in["wo"],
        "B_x": _B_in["x"],
        "B_k_cache": _B_in["k_cache"],
        "B_v_cache": _B_in["v_cache"],
        "B_wq": _B_in["wq"],
        "B_wo": _B_in["wo"],
    }

def reference(A_x, A_k_cache, A_v_cache, A_wq, A_wo, B_x, B_k_cache, B_v_cache, B_wq, B_wo):
    def _A_ref(x, k_cache, v_cache, wq, wo):
        B, Sq, D = x.shape
        Hq, Dh = 32, 128
        Hkv = k_cache.shape[1]
        rep = Hq // Hkv
        q = (lambda x, *d: x.permute(*d))((x @ wq).reshape(B, Sq, Hq, Dh), 0, 2, 1, 3)
        k = (lambda x, n, axis: torch.repeat_interleave(x, n, dim=axis))(k_cache, rep, axis=1)
        v = (lambda x, n, axis: torch.repeat_interleave(x, n, dim=axis))(v_cache, rep, axis=1)
        scores = torch.einsum("bhqd,bhkd->bhqk", q, k) * (Dh ** -0.5)
        p = _softmax(scores, axis=-1)
        o = torch.einsum("bhqk,bhkd->bhqd", p, v)
        return (lambda x, *d: x.permute(*d))(o, 0, 2, 1, 3).reshape(B, Sq, Hq * Dh) @ wo

    def _B_ref(x, k_cache, v_cache, wq, wo):
        B, Sq, D = x.shape
        Hq, Dh = 32, 128
        Hkv = k_cache.shape[1]
        rep = Hq // Hkv
        q = (lambda x, *d: x.permute(*d))((x @ wq).reshape(B, Sq, Hq, Dh), 0, 2, 1, 3)
        k = (lambda x, n, axis: torch.repeat_interleave(x, n, dim=axis))(k_cache, rep, axis=1)
        v = (lambda x, n, axis: torch.repeat_interleave(x, n, dim=axis))(v_cache, rep, axis=1)
        scores = torch.einsum("bhqd,bhkd->bhqk", q, k) * (Dh ** -0.5)
        p = _softmax(scores, axis=-1)
        o = torch.einsum("bhqk,bhkd->bhqd", p, v)
        return (lambda x, *d: x.permute(*d))(o, 0, 2, 1, 3).reshape(B, Sq, Hq * Dh) @ wo

    a = _A_ref(A_x, A_k_cache, A_v_cache, A_wq, A_wo)
    b = _B_ref(B_x, B_k_cache, B_v_cache, B_wq, B_wo)
    return torch.concatenate([a, b], axis=-1)
```

```python
import re
TRANS = ("v_exp_f32", "v_log_f32", "v_rcp_f32", "v_rsq_f32", "v_sqrt_f32", "v_sin_f32", "v_cos_f32")
def regs(tok):
    tok = tok.strip()
    m = re.fullmatch(r"-?\|?([vas])\[(\d+):(\d+)\]\|?", tok)
    if m: return {(m.group(1), i) for i in range(int(m.group(2)), int(m.group(3)) + 1)}
    m = re.fullmatch(r"-?\|?([vas])(\d+)\|?", tok)
    if m: return {(m.group(1), int(m.group(2)))}
    if tok == "vcc": return {("s", "vcc")}
    if tok == "exec": return {("s", "exec")}
    if tok == "m0": return {("s", "m0")}
    return set()
def mfma_passes(mn):
    if "4x4x4" in mn: return 2
    if "16x16x32" in mn or "16x16x16" in mn: return 4
    if "32x32x16" in mn or "32x32x8" in mn: return 8
    raise ValueError(mn)
class Ins:
    def __init__(self, text):
        self.text = text
        t = text.split(";")[0].strip()
        self.label = t.endswith(":")
        parts = t.split(None, 1)
        self.mn = parts[0] if parts else ""
        rest = parts[1] if len(parts) > 1 else ""
        ops = [o.strip() for o in re.split(r",(?![^\[]*\])", rest)] if rest else []
        if ops:
            last = ops[-1].split()
            ops[-1] = last[0] if last else ""
            self.mods = " ".join(last[1:])
        else: self.mods = ""
        self.ops = ops
        mn = self.mn
        self.kind = "other"; self.w = set(); self.r = set(); self.C = set(); self.AB = set(); self.states = 1
        R = [regs(o) for o in ops]
        U = lambda xs: set().union(*xs) if xs else set()
        if self.label or not mn or mn.startswith("."): self.kind = "none"; self.states = 0
        elif mn == "s_nop": self.kind = "nop"; self.states = int(ops[0], 0) + 1
        elif mn.startswith("v_mfma"):
            self.kind = "mfma"; self.passes = mfma_passes(mn); self.w = R[0]; self.AB = R[1] | R[2]; self.C = R[3]; self.r = self.AB | self.C
        elif mn.startswith("v_"):
            self.kind = "valu"
            self.dpp = "_dpp" in mn; self.trans = mn.replace("_e32", "").replace("_e64", "") in TRANS
            self.dot = mn.startswith("v_dot"); self.perml = mn.startswith("v_permlane")
            self.rdlane = mn.startswith("v_readfirstlane") or mn.startswith("v_readlane")
            if self.perml: self.w = R[0] | R[1]; self.r = R[0] | R[1]
            elif mn.startswith("v_add_co") or mn.startswith("v_addc_co") or mn.startswith("v_sub_co"):
                self.w = R[0] | R[1]; self.r = U(R[2:])
            else:
                self.w = R[0]; self.r = U(R[1:])
                if mn.startswith("v_fmac") or mn.startswith("v_dot2c") or self.dpp: self.r |= R[0]
            if self.dot: self.C = R[3] if len(R) > 3 else R[0]; self.AB = R[1] | R[2]
        elif mn.startswith("buffer_") or mn.startswith("global_"):
            self.kind = "vmem"
            if "load" in mn: self.w = R[0]; self.r = U(R[1:])
            elif "atomic" in mn: self.r = U(R); self.w = R[0] if "sc0" in self.mods else set()
            else: self.r = U(R); self.data = R[0] if mn.startswith("buffer_") else R[1]
            self.wide = ("x3" in mn or "x4" in mn) and "store" in mn
        elif mn.startswith("ds_"):
            self.kind = "ds"
            if "read" in mn or "permute" in mn or "swizzle" in mn: self.w = R[0]; self.r = U(R[1:])
            else: self.r = U(R)
        elif mn.startswith("s_"):
            self.kind = "salu"
            if mn.startswith(("s_cmp", "s_cbranch", "s_branch", "s_waitcnt", "s_barrier", "s_endpgm", "s_setprio", "s_sleep")): self.r = U(R)
            elif ops: self.w = R[0]; self.r = U(R[1:])
def need(p, c):
    n = 0
    vw = {x for x in p.w if x[0] in "va"}
    sw = {x for x in p.w if x[0] == "s"}
    if p.kind == "valu":
        if vw:
            if c.kind == "valu":
                if c.dpp and vw & (c.r | c.w): n = max(n, 2)
                if c.perml and vw & c.r: n = max(n, 2)
                if c.rdlane and vw & c.r: n = max(n, 1)
                if p.trans and not c.trans and vw & c.r: n = max(n, 1)
                if p.dot:
                    if c.dot and c.mn == p.mn:
                        if vw & c.AB: n = max(n, 3)
                    elif vw & (c.r | c.w): n = max(n, 3)
            if c.kind == "mfma":
                if vw & c.r: n = max(n, 2)
                if p.dot and vw & (c.r | c.w): n = max(n, 3)
            if p.dot and c.kind in ("vmem", "ds") and vw & (c.r | c.w): n = max(n, 3)
            if p.trans and c.kind in ("vmem", "ds", "mfma") and vw & c.r: n = max(n, 1)
        if sw:
            if c.kind == "valu" and sw & c.r: n = max(n, 4 if c.rdlane else 2)
            if c.kind == "vmem" and sw & c.r: n = max(n, 5)
            if c.kind == "salu" and sw & c.r: n = max(n, 1)
            if ("s", "exec") in sw: n = max(n, 5)
    if p.kind == "mfma":
        P = p.passes
        t_ab = {2: 5, 4: 8, 8: 12, 16: 20}[P]; t_ov = {2: 4, 4: 6, 8: 10, 16: 18}[P]; t_same = {2: 2, 4: 0, 8: 0, 16: 0}[P]
        if c.kind == "mfma":
            if p.w & c.AB: n = max(n, t_ab)
            if p.w & c.C: n = max(n, t_same if (p.w == c.C and p.passes == c.passes) else t_ov)
            elif p.w & c.w: n = max(n, t_ov)
        elif c.kind in ("valu", "vmem", "ds"):
            if p.w & (c.r | c.w): n = max(n, t_ab)
            if c.kind == "valu" and p.C & c.w: n = max(n, {2: 1, 4: 3, 8: 7, 16: 15}[P])
    if p.kind == "vmem" and getattr(p, "wide", False):
        if p.data & c.w: n = max(n, 2)
    if p.kind == "salu" and ("s", "m0") in p.w and c.kind in ("vmem", "ds"): n = max(n, 1)
    return n
class Emitter:
    def __init__(self):
        self.out = []
        self.vm = []
        self.nops = 0
    def raw(self, text):
        self.out.append(Ins(text)); return self
    def _pad(self, ins, hist):
        dist = 0; req = 0
        for p in reversed(hist):
            if p.kind != "none":
                k = need(p, ins) - dist
                req = max(req, k)
                dist += p.states
            if dist > 24: break
        return req
    def __call__(self, text, tag=None):
        for line in text.split("\n"):
            line = line.strip()
            if not line: continue
            ins = Ins(line)
            if ins.kind not in ("none", "nop"):
                req = self._pad(ins, self.out)
                if req > 0:
                    self.out.append(Ins(f"s_nop {req-1}")); self.nops += 1
            self.out.append(ins)
            if ins.kind == "vmem" and ("load" in ins.mn or ("atomic" in ins.mn and "sc0" in ins.mods and tag != "nocount")):
                if tag != "nocount": self.vm.append(tag)
        return self
    def wait_vm(self, tag, extra=""):
        idx = max(i for i, t in enumerate(self.vm) if t == tag)
        n = len(self.vm) - 1 - idx
        assert n <= 63, (tag, n)
        self(f"s_waitcnt vmcnt({n}){extra}")
        return n
    def check_backedge(self, start_idx):
        body = self.out[start_idx:]
        hist = list(self.out)
        for ins in body[:40]:
            if ins.kind not in ("none", "nop"):
                assert self._pad(ins, hist) <= 0, ("backedge hazard", ins.text)
            hist.append(ins)
    def text(self):
        return "\n".join((i.text if (i.label or i.text.startswith(".") or i.text.startswith(";")) else "    " + i.text) for i in self.out) + "\n"
```

```python
import sys, os
from emit import Emitter
KN = "concat_heads__gqa_block_cached__gqa_block_cached__decode_kernel"
HEADER = open("concat_heads__gqa_block_cached__gqa_block_cached__decode.s.ref").read().split("; Override launch")[0]

def gen(D=6, L8=2, polkv="nt", polq="nt", polo="nt", early=0, stamp=0, Dp=None, wo_gp=5, dbgt=0):
    R8 = L8 + 1; L = 8 * L8; R = 8 * R8
    NG = 64
    P = wo_gp
    assert (NG - L8 - P) % R8 == 0, "loop count"
    NIT = (NG - L8 - P) // R8
    if Dp is None: Dp = D
    e = Emitter()
    vLane, vOff, vWq, vWo, vM0, vM1 = 0, 1, 2, 3, 4, 5
    vQ = 6
    vM, vL = 10, 11
    vAcc = 12
    vA = 20
    vS = 22
    vU, vT = 26, 27
    vAl = 28
    vPP = 30
    vTk = 31
    vRing = 32
    assert vRing + 4 * R <= 160
    vMq = 160
    vSlot, vLdsQw, vLdsQr, vLdsOr, vLdsYw, vLdsYr, vOutOff, vF = 164, 165, 166, 167, 168, 169, 170, 172
    vXo = 171
    vX = 176
    vC0, vC1, vH = 182, 183, 184
    vXA = 186
    vTmp = 208
    sK, sV, sWq, sWo, sX, sWs, sOut, sDbg = "s[24:27]", "s[28:31]", "s[32:35]", "s[36:39]", "s[40:43]", "s[44:47]", "s[48:51]", "s[52:55]"
    LDS_Q, LDS_ML, LDS_FLAG, LDS_O, LDS_Y = 0, 2048, 2112, 4096, 8192
    LDS_SIZE = 8192 + 4 * 2560
    def v(r, n=1): return f"v{r}" if n == 1 else f"v[{r}:{r+n-1}]"
    def ac(r, n=1): return f"a{r}" if n == 1 else f"a[{r}:{r+n-1}]"
    stamp_regs = [96, 98, 100, 8, 10, 12, 14, 16, 18, 20, 22]
    def st(i):
        if stamp: e(f"s_memrealtime s[{stamp_regs[i]}:{stamp_regs[i]+1}]")
    e(f"{KN}:")
    st(0)
    if dbgt: e("s_memrealtime s[96:97]")
    e("s_cmp_ge_u32 s2, 256")
    e("s_cbranch_scc1 L_end")
    e("""s_lshr_b32 s3, s2, 7
         s_mul_i32 s7, s3, 40
         s_add_u32 s4, s0, s7
         s_addc_u32 s5, s1, 0
         s_load_dwordx8 s[8:15], s[4:5], 0
         s_load_dwordx2 s[22:23], s[4:5], 32
         s_load_dwordx4 s[16:19], s[0:1], 80
         s_load_dwordx2 s[20:21], s[0:1], 96""")
    e(f"""v_lshrrev_b32 v1, 6, v0
          v_and_b32 v{vLane}, 63, v0
          v_readfirstlane_b32 s6, v1
          v_lshlrev_b32 v{vOff}, 4, v{vLane}
          v_lshrrev_b32 v{vTmp}, 4, v{vLane}
          v_and_b32 v{vTmp+1}, 15, v{vLane}
          v_bfe_u32 v{vTmp+2}, v{vLane}, 2, 2
          v_and_b32 v{vTmp+3}, 3, v{vLane}
          v_lshlrev_b32 v{vTmp+4}, 4, v{vTmp+1}
          v_mul_u32_u24 v{vWq}, 81920, v{vTmp}
          v_add_u32 v{vWq}, v{vWq}, v{vTmp+4}
          v_mul_u32_u24 v{vXo}, 80, v{vTmp+2}
          v_mul_u32_u24 v{vTmp+5}, 20, v{vTmp}
          v_add_u32 v{vXo}, v{vXo}, v{vTmp+5}""")
    g_, m_, a_, i_, m16_ = vTmp, vTmp + 1, vTmp + 2, vTmp + 3, vTmp + 4
    e(f"""s_mul_i32 s7, s6, 40
          v_add_u32 v{vTmp+5}, s7, v{vLane}
          v_lshlrev_b32 v{vSlot}, 4, v{vTmp+5}
          v_lshlrev_b32 v{vOutOff}, 3, v{vTmp+5}
          v_cmp_gt_u32 vcc, 40, v{vLane}
          v_bfrev_b32 v{vTmp+6}, 1
          v_mov_b32 v{vTmp+8}, -1
          v_cndmask_b32 v{vSlot}, v{vTmp+6}, v{vSlot}, vcc
          v_cndmask_b32 v{vOutOff}, v{vTmp+6}, v{vOutOff}, vcc
          v_mov_b32 v{vTmp+9}, -1
          v_mov_b32 v{vTmp+10}, -1
          v_mov_b32 v{vTmp+11}, -1""")
    e("""s_and_b32 s62, s2, 31
         s_and_b32 s7, s2, 127
         s_lshl_b32 s63, s7, 20
         s_lshr_b32 s4, s2, 5
         s_and_b32 s5, s4, 3
         s_mul_i32 s57, s6, 1310720
         s_mul_i32 s61, s6, 320
         s_lshl_b32 s56, s6, 12
         s_mul_i32 s58, s62, 2560
         s_mov_b32 s26, 0x100000
         s_mov_b32 s27, 0x20000
         s_mov_b32 s30, 0x100000
         s_mov_b32 s31, 0x20000
         s_mov_b32 s35, 0x20000
         s_mov_b32 s38, 163840
         s_mov_b32 s39, 0x20000
         s_mov_b32 s42, 1280
         s_mov_b32 s43, 0x20000
         s_mov_b32 s46, 81920
         s_mov_b32 s47, 0x20000
         s_mov_b32 s50, 1280
         s_mov_b32 s51, 0x20000
         s_mov_b32 s54, 256
         s_mov_b32 s55, 0x20000
         s_lshl_b32 s7, s62, 8
         s_sub_u32 s34, 5242880, s7
         s_mul_i32 s59, s5, 1280
         s_mul_i32 s60, s4, 81920""")
    e("s_waitcnt lgkmcnt(0)")
    st(1)
    e("""s_add_u32 s40, s8, s59
         s_addc_u32 s41, s9, 0
         s_add_u32 s32, s14, s7
         s_addc_u32 s33, s15, 0
         s_add_u32 s44, s20, s60
         s_addc_u32 s45, s21, 0""")
    e(f"buffer_load_dwordx4 {v(vX,4)}, v{vXo}, {sX}, s61 offen", tag="x")
    e(f"buffer_load_dword v{vX+4}, v{vXo}, {sX}, s61 offen offset:16", tag="x")
    e("""s_add_u32 s24, s10, s63
         s_addc_u32 s25, s11, 0
         s_add_u32 s28, s12, s63
         s_addc_u32 s29, s13, 0""")
    e(f"buffer_store_dwordx4 {v(vTmp+8,4)}, v{vSlot}, {sWs}, s58 offen sc1")
    def issue_stream(j):
        jj = j & 7
        e(f"buffer_load_dwordx4 {v(vRing + 4 * (j % R), 4)}, v{vOff}, {sK if jj < 4 else sV}, s56 offen offset:{(jj & 3) * 1024} {polkv}", tag=("s", j))
        if jj == 7: e("s_add_u32 s56, s56, 16384")
    nxt = 0
    for t in range(10):
        for a in range(4):
            n = 4 * t + a
            e(f"buffer_load_dwordx4 {ac(4*n,4)}, v{vWq}, {sWq}, s57 offen {polq}", tag=("q", n))
            if a < 3: e(f"s_add_u32 s57, s57, {40*8192}")
            elif t < 9: e(f"s_sub_u32 s57, s57, {(120-1)*8192}")
            if early and nxt < early and n % max(1, 40 // early) == max(1, 40 // early) - 1:
                issue_stream(nxt); nxt += 1
    while nxt < L:
        issue_stream(nxt); nxt += 1
    e(f"""s_mul_i32 s7, s62, 163840
          s_add_u32 s36, s22, s7
          s_addc_u32 s37, s23, 0
          s_mul_i32 s7, s5, 2560
          s_mul_i32 s57, s3, 1280
          s_add_u32 s7, s7, s57
          s_add_u32 s48, s16, s7
          s_addc_u32 s49, s17, 0
          s_mov_b32 s52, s18
          s_mov_b32 s53, s19
          s_lshl_b32 s61, s4, 5
          s_mul_i32 s57, s6, 40960
          s_mov_b32 s59, 0x3e0293ee""")
    e(f"""v_and_b32 v{vTmp+5}, 1, v{i_}
          v_lshlrev_b32 v{vTmp+5}, 4, v{vTmp+5}
          v_lshlrev_b32 v{vTmp+5}, v{vTmp+5}, 1
          v_cmp_gt_u32 vcc, 2, v{i_}
          v_mul_u32_u24 v{vH}, 0xffff, v{vTmp+5}
          v_mul_u32_u24 v{vWo}, 1280, v{g_}
          v_cndmask_b32 v{vC0}, 0, v{vTmp+5}, vcc
          v_cndmask_b32 v{vC1}, v{vTmp+5}, 0, vcc
          v_add_u32 v{vWo}, v{vWo}, v{m16_}
          v_mul_u32_u24 v{vM0}, 0xffff, v{vC0}
          v_mul_u32_u24 v{vM1}, 0xffff, v{vC1}
          v_lshrrev_b32 v{vTmp+6}, 1, v{m_}""")
    for r in range(4):
        e(f"v_cmp_eq_u32 vcc, {r}, v{vTmp+6}")
        e(f"v_cndmask_b32 v{vMq+r}, 0, v{vH}, vcc")
    e(f"""s_lshl_b32 s7, s6, 9
          v_lshlrev_b32 v{vLdsQr}, 5, v{m_}
          v_lshlrev_b32 v{vTmp+5}, 3, v{g_}
          v_add3_u32 v{vLdsQw}, v{vLdsQr}, v{vTmp+5}, s7
          v_and_b32 v{vTmp+5}, 7, v{m_}
          v_lshlrev_b32 v{vTmp+5}, 2, v{vTmp+5}
          s_lshl_b32 s7, s6, 5
          v_add3_u32 v{vTmp+5}, v{vTmp+5}, v{g_}, s7
          v_lshlrev_b32 v{vLdsOr}, 2, v{vTmp+5}
          v_add_u32 v{vLdsOr}, {LDS_O}, v{vLdsOr}
          s_mul_i32 s7, s6, 2560
          s_add_u32 s7, s7, {LDS_Y}
          v_lshlrev_b32 v{vTmp+5}, 4, v{g_}
          v_add3_u32 v{vLdsYw}, v{vLdsQr}, v{vTmp+5}, s7
          v_min_u32 v{vTmp+5}, 39, v{vLane}
          s_mul_i32 s7, s6, 640
          s_add_u32 s7, s7, {LDS_Y}
          v_lshlrev_b32 v{vTmp+5}, 4, v{vTmp+5}
          v_add_u32 v{vLdsYr}, s7, v{vTmp+5}
          v_mov_b32 v{vM}, 0xff800000
          v_mov_b32 v{vL}, 0""")
    if stamp:
        e("""s_add_u32 s60, s20, 0x10000000
             s_addc_u32 s7, s21, 0
             s_mov_b32 s20, s60
             s_mov_b32 s21, s7""")
    e.wait_vm("x")
    if stamp:
        e("s_mov_b32 s40, s20\ns_mov_b32 s41, s21\ns_mov_b32 s42, 0x100000")
    st(2)
    for t in range(10):
        for c, vc in enumerate((vC0, vC1)):
            e(f"v_mul_u32_u24_sdwa v{vXA+2*t+c}, v{vX+(t>>1)}, v{vc} dst_sel:DWORD dst_unused:UNUSED_PAD src0_sel:WORD_{t&1} src1_sel:DWORD")
    for t in range(10):
        for a in range(4):
            n = 4 * t + a
            e.wait_vm(("q", n))
            c0 = "0" if n == 0 else v(vAcc, 4); c1 = "0" if n == 0 else v(vAcc + 4, 4)
            e(f"v_mfma_f32_4x4x4_16b_bf16 {v(vAcc,4)}, {v(vXA+2*t,2)}, {ac(4*n,2)}, {c0} cbsz:2 abid:{a}")
            e(f"v_mfma_f32_4x4x4_16b_bf16 {v(vAcc+4,4)}, {v(vXA+2*t,2)}, {ac(4*n+2,2)}, {c1} cbsz:2 abid:{a}")
    st(3)
    def reduce_rows():
        for j in range(4): e(f"v_permlane32_swap_b32 v{vAcc+j}, v{vAcc+4+j}")
        e(f"v_pk_add_f32 {v(vAcc,2)}, {v(vAcc,2)}, {v(vAcc+4,2)}")
        e(f"v_pk_add_f32 {v(vAcc+2,2)}, {v(vAcc+2,2)}, {v(vAcc+6,2)}")
        for j in range(2): e(f"v_permlane16_swap_b32 v{vAcc+j}, v{vAcc+2+j}")
        e(f"v_pk_add_f32 {v(vAcc,2)}, {v(vAcc,2)}, {v(vAcc+2,2)}")
    reduce_rows()
    e(f"ds_write_b64 v{vLdsQw}, {v(vAcc,2)} offset:{LDS_Q}")
    e("s_waitcnt lgkmcnt(0)")
    e("s_barrier")
    for w in range(4):
        for hh in range(2):
            e(f"ds_read_b128 {v(vTmp+8*w+4*hh,4)}, v{vLdsQr} offset:{LDS_Q+512*w+16*hh}")
    for j in range(8): e(f"v_mov_b32 v{vAcc+j}, 0")
    e("s_waitcnt lgkmcnt(4)")
    for j in range(0, 8, 2): e(f"v_pk_add_f32 {v(vTmp+j,2)}, {v(vTmp+j,2)}, {v(vTmp+8+j,2)}")
    e("s_waitcnt lgkmcnt(0)")
    for j in range(0, 8, 2): e(f"v_pk_add_f32 {v(vTmp+16+j,2)}, {v(vTmp+16+j,2)}, {v(vTmp+24+j,2)}")
    for j in range(0, 8, 2): e(f"v_pk_add_f32 {v(vTmp+j,2)}, {v(vTmp+j,2)}, {v(vTmp+16+j,2)}")
    for j in range(4): e(f"v_cvt_pk_bf16_f32 v{vQ+j}, v{vTmp+2*j}, v{vTmp+2*j+1}")
    st(4)
    def dpp(op, d, s0, s1, ctl, bank="0xf"):
        e(f"{op}_dpp v{d}, v{s0}, v{s1} {ctl} row_mask:0xf bank_mask:{bank}")
    def xrow(op, r, tmp):
        e(f"v_mov_b32 v{tmp}, v{r}")
        e(f"v_permlane32_swap_b32 v{r}, v{tmp}")
        e(f"{op} v{r}, v{r}, v{tmp}")
        e(f"v_mov_b32 v{tmp}, v{r}")
        e(f"v_permlane16_swap_b32 v{r}, v{tmp}")
        e(f"{op} v{r}, v{r}, v{tmp}")
    def consume(j, last=False):
        jj = j & 7; b = vRing + 4 * (j % R)
        if jj < 4:
            s = vS + jj
            for k in range(4):
                e(f"v_dot2_f32_bf16 v{s}, v{b+k}, v{vQ+k}, {'0' if k == 0 else 'v%d' % s}")
            if jj == 3:
                dpp("v_add_f32", vS, vS, vS, "row_ror:8", "0x3")
                dpp("v_add_f32", vS + 1, vS + 1, vS + 1, "row_ror:8", "0x3")
                dpp("v_add_f32", vS, vS + 2, vS + 2, "row_ror:8", "0xc")
                dpp("v_add_f32", vS + 1, vS + 3, vS + 3, "row_ror:8", "0xc")
                dpp("v_add_f32", vU, vS, vS, "row_shl:4", "0x5")
                dpp("v_add_f32", vU, vS + 1, vS + 1, "row_shr:4", "0xa")
                dpp("v_add_f32", vU, vU, vU, "quad_perm:[1,0,3,2]")
                dpp("v_add_f32", vU, vU, vU, "quad_perm:[2,3,0,1]")
                e(f"v_mul_f32 v{vU}, s59, v{vU}")
                dpp("v_max_f32", vT, vU, vU, "row_ror:4")
                dpp("v_max_f32", vT, vT, vT, "row_ror:8")
                e(f"v_max_f32 v{vT}, v{vT}, v{vM}")
                if last: xrow("v_max_f32", vT, vPP)
                e(f"v_sub_f32 v{vAl}, v{vM}, v{vT}")
                e(f"v_sub_f32 v{vU}, v{vU}, v{vT}")
                e(f"v_exp_f32 v{vAl}, v{vAl}")
                e(f"v_exp_f32 v{vU}, v{vU}")
                e(f"v_mov_b32 v{vM}, v{vT}")
                for k in range(0, 8, 2):
                    e(f"v_pk_mul_f32 {v(vAcc+k,2)}, {v(vAcc+k,2)}, {v(vAl,2)} op_sel_hi:[1,0]")
                e(f"v_cvt_pk_bf16_f32 v{vPP}, v{vU}, v{vU}")
                e(f"v_fma_f32 v{vL}, v{vL}, v{vAl}, v{vU}")
                e(f"v_and_b32 v{vA}, v{vPP}, v{vM0}")
                e(f"v_and_b32 v{vA+1}, v{vPP}, v{vM1}")
        else:
            a = jj - 4
            e(f"v_mfma_f32_4x4x4_16b_bf16 {v(vAcc,4)}, {v(vA,2)}, {v(b,2)}, {v(vAcc,4)} cbsz:2 abid:{a}")
            e(f"v_mfma_f32_4x4x4_16b_bf16 {v(vAcc+4,4)}, {v(vA,2)}, {v(b+2,2)}, {v(vAcc+4,4)} cbsz:2 abid:{a}")
    j = L
    for n in range(8 * P):
        e.wait_vm(("s", max(j - Dp, j - L)))
        issue_stream(j)
        if n < 40:
            e(f"buffer_load_dwordx4 {ac(4*n,4)}, v{vWo}, {sWo}, s57 offen offset:{(n%5)*256} {polo}", tag=("o", n))
            if n % 5 == 4: e("s_add_u32 s57, s57, 5120")
        if 1 <= n <= 31:
            e(f"s_xor_b32 s7, s62, {n}")
            e(f"s_mul_i32 s{64+n}, s7, 2560")
        consume(j - L)
        j += 1
    st(5)
    e(f"s_mov_b32 s63, {NIT}")
    e(".p2align 3")
    e("L_loop:")
    loop_start = len(e.out)
    for n in range(R):
        e(f"s_waitcnt vmcnt({D-1})")
        issue_stream(j)
        consume(j - L)
        j += 1
    e("s_sub_u32 s63, s63, 1\ns_cmp_lg_u32 s63, 0\ns_cbranch_scc1 L_loop")
    e.check_backedge(loop_start)
    j += (NIT - 1) * R
    assert j == 512
    e.vm = [("s", k) for k in range(512 - R, 512)]
    st(6)
    e("s_cmp_lg_u32 s6, 0\ns_cbranch_scc1 L_nock")
    e(f"s_mov_b64 exec, 1\nv_mov_b32 v{vTk}, 1")
    e(f"buffer_atomic_add v{vTk}, off, {sDbg}, s61 sc0", tag="nocount")
    e("s_mov_b64 exec, -1")
    e("L_nock:")
    for k in range(512 - L, 512):
        e.wait_vm(("s", k))
        if k == 511: st(7)
        consume(k, last=(k >> 3) == NG - 1)
        if k == 507:
            dpp("v_add_f32", vL, vL, vL, "row_ror:4")
            dpp("v_add_f32", vL, vL, vL, "row_ror:8")
            xrow("v_add_f32", vL, vPP)
            e(f"s_lshl_b32 s7, s6, 3\nv_mov_b32 v{vT}, s7")
            e("s_mov_b64 exec, 1")
            e(f"ds_write_b64 v{vT}, {v(vM,2)} offset:{LDS_ML}")
            e("s_mov_b64 exec, -1")
            e(f"v_mov_b32 v{vT}, 0")
            e("s_waitcnt lgkmcnt(0)\ns_barrier")
            e(f"ds_read_b128 {v(vTmp,4)}, v{vT} offset:{LDS_ML}")
            e(f"ds_read_b128 {v(vTmp+4,4)}, v{vT} offset:{LDS_ML+16}")
        if k == 508:
            e("s_waitcnt lgkmcnt(0)")
            e(f"v_max3_f32 v{vT}, v{vTmp}, v{vTmp+2}, v{vTmp+4}")
            e(f"v_max_f32 v{vT}, v{vT}, v{vTmp+6}")
            for w in range(4): e(f"v_sub_f32 v{vTmp+2*w}, v{vTmp+2*w}, v{vT}")
            e(f"v_sub_f32 v{vF}, v{vM}, v{vT}")
            for w in range(4): e(f"v_exp_f32 v{vTmp+2*w}, v{vTmp+2*w}")
            e(f"v_exp_f32 v{vF}, v{vF}")
            e(f"v_mul_f32 v{vT}, v{vTmp}, v{vTmp+1}")
            for w in range(1, 4): e(f"v_fmac_f32 v{vT}, v{vTmp+2*w}, v{vTmp+2*w+1}")
            e(f"v_rcp_f32 v{vT}, v{vT}")
            e(f"v_mul_f32 v{vF}, v{vF}, v{vT}")
    reduce_rows()
    e(f"v_pk_mul_f32 {v(vAcc,2)}, {v(vAcc,2)}, {v(vF,2)} op_sel_hi:[1,0]")
    e(f"ds_write_b64 v{vLdsQw}, {v(vAcc,2)} offset:{LDS_O}")
    e(f"v_mov_b32 v{vT}, 0")
    e("s_cmp_lg_u32 s6, 0\ns_cbranch_scc1 L_nofl")
    e("s_waitcnt vmcnt(0)\ns_mov_b64 exec, 1")
    e(f"ds_write_b32 v{vT}, v{vTk} offset:{LDS_FLAG}")
    e("s_mov_b64 exec, -1")
    e("L_nofl:")
    e("s_waitcnt lgkmcnt(0)\ns_barrier")
    st(8)
    e(f"ds_read2st64_b32 {v(vTmp,2)}, v{vLdsOr} offset0:0 offset1:2")
    e(f"ds_read2st64_b32 {v(vTmp+2,2)}, v{vLdsOr} offset0:4 offset1:6")
    e(f"ds_read_b32 v{vTk}, v{vT} offset:{LDS_FLAG}")
    e("s_waitcnt lgkmcnt(1)")
    e(f"v_pk_add_f32 {v(vTmp,2)}, {v(vTmp,2)}, {v(vTmp+2,2)}")
    e(f"v_add_f32 v{vTmp}, v{vTmp}, v{vTmp+1}")
    e(f"v_cvt_pk_bf16_f32 v{vPP}, v{vTmp}, v{vTmp}")
    vY = vTmp + 8
    vOA = vTmp + 28
    for n in range(8):
        A = vOA + 4 * (n & 1)
        for r in range(4): dpp("v_and_b32", A + r, vPP, vMq + r, f"row_newbcast:{n}")
        for cb in range(5):
            e(f"v_mfma_f32_16x16x32_bf16 {v(vY+4*cb,4)}, {v(A,4)}, {ac(4*(5*n+cb),4)}, {'0' if n == 0 else v(vY+4*cb,4)}")
    e("s_waitcnt lgkmcnt(0)")
    e(f"v_readfirstlane_b32 s60, v{vTk}")
    e("s_mov_b64 exec, 0xffffffff")
    for cb in range(5): e(f"ds_write_b128 v{vLdsYw}, {v(vY+4*cb,4)} offset:{512*cb}")
    e("s_mov_b64 exec, -1")
    e("s_waitcnt lgkmcnt(0)\ns_barrier")
    st(9)
    for w in range(4): e(f"ds_read_b128 {v(vTmp+4*w,4)}, v{vLdsYr} offset:{2560*w}")
    e("s_waitcnt lgkmcnt(2)")
    for k in (0, 2): e(f"v_pk_add_f32 {v(vTmp+k,2)}, {v(vTmp+k,2)}, {v(vTmp+4+k,2)}")
    e("s_waitcnt lgkmcnt(0)")
    for k in (0, 2): e(f"v_pk_add_f32 {v(vTmp+8+k,2)}, {v(vTmp+8+k,2)}, {v(vTmp+12+k,2)}")
    vR = 128
    st(10)
    e("s_cmp_eq_u32 s60, 31\ns_cbranch_scc1 L_red")
    for k in (0, 2): e(f"v_pk_add_f32 {v(vTmp+k,2)}, {v(vTmp+k,2)}, {v(vTmp+8+k,2)}")
    for k in range(4): e(f"v_min_u32 v{vTmp+k}, -2, v{vTmp+k}")
    e(f"buffer_store_dwordx4 {v(vTmp,4)}, v{vSlot}, {sWs}, s58 offen sc1")
    e("s_branch L_fin")
    e("L_red:")
    vOwn = 12
    for k in (0, 2): e(f"v_pk_add_f32 {v(vOwn+k,2)}, {v(vTmp+k,2)}, {v(vTmp+8+k,2)}")
    e(f"v_mov_b32 v20, v{vSlot}\nv_mov_b32 v21, v{vOutOff}")
    e("s_mov_b32 s63, 0x100000")
    e("L_poll:")
    e.vm = []
    for k in range(1, 32):
        e(f"buffer_load_dwordx4 {v(vR+4*k,4)}, v20, {sWs}, s{64+k} offen sc1", tag=("r", k))
    vN = 32
    for jx in range(16):
        e.wait_vm(("r", 2 * jx + 1))
        lo = vOwn if jx == 0 else vR + 8 * jx
        for k in (0, 2): e(f"v_pk_add_f32 {v(vN+4*jx+k,2)}, {v(lo+k,2)}, {v(vR+8*jx+4+k,2)}")
    n = 16
    while n > 1:
        for jx in range(n // 2):
            for k in (0, 2): e(f"v_pk_add_f32 {v(vN+4*jx+k,2)}, {v(vN+8*jx+k,2)}, {v(vN+8*jx+4+k,2)}")
        n //= 2
    e(f"v_cmp_u_f32 vcc, v{vN}, v{vN+1}")
    e(f"v_cmp_u_f32 s[4:5], v{vN+2}, v{vN+3}")
    e("s_or_b64 vcc, vcc, s[4:5]")
    e("s_cbranch_scc0 L_done")
    regs_ = list(range(vR + 4, vR + 128))
    e(f"v_max_u32 v22, v{regs_[0]}, v{regs_[1]}")
    for k in range(2, len(regs_), 2): e(f"v_max3_u32 v22, v22, v{regs_[k]}, v{regs_[k+1]}")
    e("v_cmp_eq_u32 vcc, -1, v22")
    e("s_cmp_lg_u64 vcc, 0")
    e("s_cselect_b32 s7, 1, 0x100000")
    e("s_sub_u32 s63, s63, s7")
    e("s_cmp_gt_i32 s63, 0")
    e("s_cbranch_scc1 L_poll")
    e("L_done:")
    e(f"v_cvt_pk_bf16_f32 v22, v{vN}, v{vN+1}")
    e(f"v_cvt_pk_bf16_f32 v23, v{vN+2}, v{vN+3}")
    e(f"buffer_store_dwordx2 v[22:23], v21, {sOut}, 0 offen")
    e("L_fin:")
    if stamp:
        e("s_waitcnt vmcnt(0)")
        e("s_memrealtime s[64:65]")
        e("s_getreg_b32 s66, hwreg(HW_REG_XCC_ID)")
        e("s_waitcnt lgkmcnt(0)")
        for i, r in enumerate(stamp_regs + [64, 66, 60]):
            e(f"v_writelane_b32 v24, s{r}, {i}")
        e("s_lshl_b32 s7, s2, 2\ns_add_u32 s7, s7, s6\ns_lshl_b32 s7, s7, 6")
        e(f"v_lshlrev_b32 v25, 2, v{vLane}")
        e("s_mov_b64 exec, 0xffff")
        e(f"buffer_store_dword v24, v25, {sX}, s7 offen")
    if dbgt:
        e("s_waitcnt vmcnt(0)")
        e("s_memrealtime s[64:65]")
        e("s_waitcnt lgkmcnt(0)")
        e("s_not_b32 s96, s96")
        e("s_mov_b64 exec, 1")
        e("v_mov_b32 v24, s96\nv_mov_b32 v25, s64")
        e(f"buffer_atomic_umax v24, off, {sDbg}, 0 offset:4")
        e(f"buffer_atomic_umax v25, off, {sDbg}, 0 offset:8")
    e("L_end:")
    e("s_endpgm")
    body = e.text()
    pre = HEADER + f"; @launch grid=(256,1,1) block=(256,1,1) lds={LDS_SIZE}\n"
    pre += f'.amdgcn_target "amdgcn-amd-amdhsa--gfx950"\n.text\n.globl {KN}\n.p2align 8\n.type {KN},@function\n'
    post = f""".section .rodata,"a"
.p2align 6
.amdhsa_kernel {KN}
  .amdhsa_next_free_vgpr 416
  .amdhsa_next_free_sgpr 102
  .amdhsa_accum_offset 256
  .amdhsa_group_segment_fixed_size 0
  .amdhsa_kernarg_size 104
  .amdhsa_user_sgpr_count 2
  .amdhsa_user_sgpr_kernarg_segment_ptr 1
  .amdhsa_system_sgpr_workgroup_id_x 1
  .amdhsa_float_denorm_mode_32 3
.end_amdhsa_kernel
"""
    return pre + body + post

def parse(spec):
    kw = {}
    if spec and spec != "base":
        for kv in spec.split(","):
            k, val = kv.split("=")
            kw[k] = int(val) if val.lstrip("-").isdigit() else val.replace("+", " ")
    return kw
if __name__ == "__main__":
    import build
    os.makedirs("k", exist_ok=True)
    names = []
    for spec in sys.argv[1:]:
        nm = "k_" + spec.replace(",", "_").replace("=", "").replace("+", "")
        p = f"k/{nm}.s"
        open(p, "w").write(gen(**parse(spec)))
        build.build(p)
        names.append(nm)
    print(" ".join(f"work/k/{n}.launch" for n in names))
```
